```python
import torch

def _softmax(x, axis=-1):
    return torch.softmax(x, dim=axis)

def _gelu(x):
    return torch.nn.functional.gelu(x, approximate='tanh')

def _silu(x):
    return torch.nn.functional.silu(x)

def _sigmoid(x):
    return torch.sigmoid(x)

def _layernorm(x, axis=-1, eps=1e-05):
    m = x.mean(dim=axis, keepdim=True)
    v = x.var(dim=axis, keepdim=True, unbiased=False)
    return (x - m) / torch.sqrt(v + eps)

def _scatter_add(tgt, idx, src, axis=0):
    return tgt.clone().index_add_(axis, idx, src)

def _segment_sum(src, seg, n):
    out = torch.zeros((n,) + src.shape[1:], dtype=src.dtype)
    return out.index_add_(0, seg, src)

def _pad(x, pw):
    flat = tuple((v for pair in reversed(pw) for v in pair))
    return torch.nn.functional.pad(x, flat)
kernel_name = 'adaLN_cond__sliding_block_cached__glu_gated_bilinear__decode'

def setup_inputs():

    _w = lambda a: (lambda t: t.to(torch.bfloat16) if t.is_floating_point() else t)(torch.as_tensor(a))

    def _A_setup():
        B, Sq, D = (1, 1, 512)
        Hq, Hkv, Sk, Dh = (32, 8, 65536, 128)
        assert Hq % Hkv == 0, (Hq, Hkv)
        return {'x': _w((lambda *s: torch.randn(*s, dtype=torch.bfloat16) * 0.1)(B, Sq, D)), 'k_cache': _w((lambda *s: torch.randn(*s, dtype=torch.bfloat16) * 0.8)(B, Hkv, Sk, Dh)), 'v_cache': _w((lambda *s: torch.randn(*s, dtype=torch.bfloat16) * 3.2)(B, Hkv, Sk, Dh)), 'wq': _w((lambda *s: torch.randn(*s, dtype=torch.bfloat16) * 0.8)(D, Hq * Dh) * D ** (-0.5)), 'wo': _w((lambda *s: torch.randn(*s, dtype=torch.bfloat16) * 3.2)(Hq * Dh, D) * (Hq * Dh) ** (-0.5))}
    _A_in = _A_setup()

    def _B_setup():
        B, S, D, F = (1, 1, 512, 1792)
        return {'x': _w((lambda *s: torch.randn(*s, dtype=torch.bfloat16) * 0.1)(B, S, D)), 'w_gate': _w((lambda *s: torch.randn(*s, dtype=torch.bfloat16) * 3.2)(D, F) * D ** (-0.5)), 'w_up': _w((lambda *s: torch.randn(*s, dtype=torch.bfloat16) * 3.2)(D, F) * D ** (-0.5)), 'w_down': _w((lambda *s: torch.randn(*s, dtype=torch.bfloat16) * 3.2)(F, D) * F ** (-0.5))}
    _B_in = _B_setup()
    return {'A_x': _A_in['x'], 'A_k_cache': _A_in['k_cache'], 'A_v_cache': _A_in['v_cache'], 'A_wq': _A_in['wq'], 'A_wo': _A_in['wo'], 'B_x': _B_in['x'], 'B_w_gate': _B_in['w_gate'], 'B_w_up': _B_in['w_up'], 'B_w_down': _B_in['w_down'], 'c': _w((lambda *s: torch.randn(*s, dtype=torch.bfloat16) * 0.4)(1, 512) * 8.0), 'w_mod': _w((lambda *s: torch.randn(*s, dtype=torch.bfloat16) * 0.4)(512, 6 * 512) * 512 ** (-0.5) * 8.0)}

def reference(A_x, A_k_cache, A_v_cache, A_wq, A_wo, B_x, B_w_gate, B_w_up, B_w_down, c, w_mod):

    def _A_ref(x, k_cache, v_cache, wq, wo):
        B, Sq, D = x.shape
        Hq, Dh = (32, 128)
        Hkv, Sk = (k_cache.shape[1], k_cache.shape[2])
        W = min(4096, max(256, Sk // 4))
        rep = Hq // Hkv
        q = (lambda x, *d: x.permute(*d))((x @ wq).reshape(B, Sq, Hq, Dh), 0, 2, 1, 3)
        k = (lambda x, n, axis: torch.repeat_interleave(x, n, dim=axis))(k_cache[:, :, Sk - W:, :], rep, axis=1)
        v = (lambda x, n, axis: torch.repeat_interleave(x, n, dim=axis))(v_cache[:, :, Sk - W:, :], rep, axis=1)
        scores = torch.einsum('bhqd,bhkd->bhqk', q, k) * Dh ** (-0.5)
        p = _softmax(scores, axis=-1)
        o = torch.einsum('bhqk,bhkd->bhqd', p, v)
        return (lambda x, *d: x.permute(*d))(o, 0, 2, 1, 3).reshape(B, Sq, Hq * Dh) @ wo

    def _B_ref(x, w_gate, w_up, w_down):
        g = torch.einsum('bsd,df->bsf', x, w_gate)
        u = torch.einsum('bsd,df->bsf', x, w_up)
        h = g * u
        return torch.einsum('bsf,fd->bsd', h, w_down)
    x = A_x
    mod = (_silu(c) @ w_mod).reshape(c.shape[0], 6, 1, -1)
    sa, ca, ga, sb, cb, gb = (mod[:, 0].clone(), mod[:, 1].clone(), mod[:, 2].clone(), mod[:, 3].clone(), mod[:, 4].clone(), mod[:, 5].clone())
    h = _layernorm(x, axis=-1) * (1 + ca) + sa
    x = x + ga * _A_ref(h, A_k_cache, A_v_cache, A_wq, A_wo)
    h = _layernorm(x, axis=-1) * (1 + cb) + sb
    x = x + gb * _B_ref(h, B_w_gate, B_w_up, B_w_down)
    return x
```

```python
import sys

KNAME = 'adaLN_cond__sliding_block_cached__glu_gated_bilinear__decode'
KN = KNAME + '_kernel'

WS_EPOCH = 0
WS_H1 = 0x1000
WS_MOD = 0x4000
WS_H2F = 0x8000
WS_H2S = 0xC000
WS_H4 = 0x10000
WS_MLF = 0x14000
WS_MLS = 0x16000
WS_H5 = 0x20000
WS_H3F = 0x40000
WS_H3S = 0x80000
WS_DBG = 0x100000

LDS_TOTAL = 151552
A_K = 0
A_V = 65536
A_Q = 131072
A_M = A_Q + 1280
A_L = A_M + 64
A_P = A_Q + 2048
B_WQ = 0
B_WO = 65536
B_X = 131072
B_O = B_X + 1024
M_AC = 0
M_MR = 16384
M_GATE = 49152
M_UP = 81920
M_DN = 114688
M_S = 147456
M_H2 = M_S + 1024
M_N = M_S + 2048
M_ST = M_N + 64
M_HH = M_ST + 64

POLL_MAX = 1 << 20
FALLBACK_N = 256

LOG2E = 0x3fb8aa3b
NLOG2E = 0xbfb8aa3b
SCALE = 0x3db504f3
EPS = 0x3727c5ac
INV512 = 0x3b000000


class Gen:
    def __init__(self, debug=False, opts=None):
        self.L = []
        self.debug = debug
        self.opts = opts or {}
        self.uid = 0

    def __call__(self, s):
        for line in s.split('\n'):
            line = line.strip()
            if line:
                self.L.append(line if line.endswith(':') else '    ' + line)

    def lab(self, base):
        self.uid += 1
        return 'L_%s_%d' % (base, self.uid)

    def ts(self, i):
        if self.debug:
            self('s_memrealtime s[%d:%d]\ns_waitcnt lgkmcnt(0)' % (70 + 2 * i, 71 + 2 * i))

    def dump(self, n=12):
        if self.debug:
            self('s_lshl_b32 s60, s2, 3\ns_add_u32 s60, s60, s6\ns_lshl_b32 s60, s60, 6\ns_add_u32 s60, s60, %d' % WS_DBG)
            self('s_add_u32 s62, s40, s60\ns_addc_u32 s63, s41, 0\ns_mov_b64 exec, 1\nv_mov_b32 v2, 0')
            for i in range(n):
                self('v_mov_b32 v3, s%d\nglobal_store_dword v2, v3, s[62:63] offset:%d' % (70 + 2 * i, 4 * i))

    def end(self):
        self.dump()
        self('s_endpgm')

    def srd(self, d, lo, hi, add_sgpr, nrec):
        if add_sgpr is None:
            self('s_mov_b32 s%d, s%d\ns_and_b32 s%d, s%d, 0xffff' % (d, lo, d + 1, hi))
        else:
            self('s_add_u32 s%d, s%d, %s\ns_addc_u32 s%d, s%d, 0\ns_and_b32 s%d, s%d, 0xffff' % (d, lo, add_sgpr, d + 1, hi, d + 1, d + 1))
        self('s_mov_b32 s%d, %s\ns_mov_b32 s%d, 0x20000' % (d + 2, nrec, d + 3))

    def wsbase(self, d, off, add_sgpr=None):
        if add_sgpr is None:
            self('s_add_u32 s%d, s40, %d\ns_addc_u32 s%d, s41, 0' % (d, off, d + 1))
        else:
            self('s_add_u32 s%d, %s, %d\ns_add_u32 s%d, s40, s%d\ns_addc_u32 s%d, s41, 0' % (d, add_sgpr, off, d, d, d + 1))

    def get_tag(self):
        self('s_waitcnt lgkmcnt(0)\ns_add_u32 s42, s42, 1\ns_and_b32 s42, s42, 0xff')

    def check(self, regs, tmp):
        t0, t1, t2 = tmp
        first = True
        for i, r in enumerate(regs):
            if first:
                self('v_bitop3_b32 v%d, v%d, v%d, s42 bitop3:0x7e' % (t0, r, r + 1))
                self('v_bitop3_b32 v%d, v%d, v%d, s42 bitop3:0x7e' % (t1, r + 2, r + 3))
                if len(regs) == 1:
                    self('v_or_b32 v%d, v%d, v%d' % (t0, t0, t1))
                first = False
            else:
                self('v_bitop3_b32 v%d, v%d, v%d, s42 bitop3:0x7e' % (t2, r, r + 1))
                self('v_or3_b32 v%d, v%d, v%d, v%d' % (t0, t0, t1, t2))
                self('v_bitop3_b32 v%d, v%d, v%d, s42 bitop3:0x7e' % (t1, r + 2, r + 3))
                if i == len(regs) - 1:
                    self('v_or_b32 v%d, v%d, v%d' % (t0, t0, t1))
        self('v_and_b32 v%d, 0xff, v%d\nv_cmp_ne_u32 vcc, 0, v%d' % (t0, t0, t0))

    def poll(self, loads, regs, tmp, fallback=None, mask_retry=True):
        lp = self.lab('poll'); ok = self.lab('ok')
        self('s_mov_b32 s43, 0')
        self(lp + ':')
        for ld in loads:
            self(ld)
        self('s_waitcnt vmcnt(0)')
        self.check(regs, tmp)
        self('s_cbranch_vccz %s' % ok)
        if mask_retry:
            self('s_mov_b64 exec, vcc')
        self('s_add_u32 s43, s43, 1')
        if fallback:
            self('s_cmp_ge_u32 s43, %d' % FALLBACK_N)
            for (d, s) in fallback:
                self('s_cselect_b64 s[%d:%d], s[%d:%d], s[%d:%d]' % (d, d + 1, s, s + 1, d, d + 1))
        self('s_cmp_lt_u32 s43, %d\ns_cbranch_scc1 %s' % (POLL_MAX, lp))
        self(ok + ':')
        if mask_retry:
            self('s_mov_b64 exec, -1')

    def rs4(self, a):
        self('s_nop 1')
        self('v_permlane32_swap_b32 v%d, v%d' % (a, a + 2))
        self('v_permlane32_swap_b32 v%d, v%d' % (a + 1, a + 3))
        self('v_add_f32 v%d, v%d, v%d' % (a, a, a + 2))
        self('v_add_f32 v%d, v%d, v%d' % (a + 1, a + 1, a + 3))
        self('s_nop 1')
        self('v_permlane16_swap_b32 v%d, v%d' % (a, a + 1))
        self('v_add_f32 v%d, v%d, v%d' % (a, a, a + 1))

    def rowsel(self, d, a, m1, m2, m3):
        self('v_cndmask_b32 v%d, v%d, v%d, s[%d:%d]' % (d, a, a + 1, m1, m1 + 1))
        self('v_cndmask_b32 v%d, v%d, v%d, s[%d:%d]' % (d, d, a + 2, m2, m2 + 1))
        self('v_cndmask_b32 v%d, v%d, v%d, s[%d:%d]' % (d, d, a + 3, m3, m3 + 1))

    def rowmasks(self, m1, m2, m3):
        self('s_mov_b32 s%d, 0xffff0000\ns_mov_b32 s%d, 0' % (m1, m1 + 1))
        self('s_mov_b32 s%d, 0\ns_mov_b32 s%d, 0x0000ffff' % (m2, m2 + 1))
        self('s_mov_b32 s%d, 0\ns_mov_b32 s%d, 0xffff0000' % (m3, m3 + 1))

    def xrows(self, op, v, t):
        self('v_mov_b32 v%d, v%d\ns_nop 1\nv_permlane16_swap_b32 v%d, v%d\n%s v%d, v%d, v%d' % (t, v, v, t, op, v, v, t))
        self('v_mov_b32 v%d, v%d\ns_nop 1\nv_permlane32_swap_b32 v%d, v%d\n%s v%d, v%d, v%d' % (t, v, v, t, op, v, v, t))

    def dpp(self, op, v, ctrl):
        self('s_nop 1\n%s_dpp v%d, v%d, v%d %s row_mask:0xf bank_mask:0xf' % (op, v, v, v, ctrl))

    def gemv16(self, acc, wa, xb, xaddr, xoff, nx=8):
        for t in range(nx):
            self('ds_read_b128 v[%d:%d], v%d offset:%d' % (xb + 4 * t, xb + 4 * t + 3, xaddr, xoff + 64 * t))
        for t in range(16):
            issued = min(16, nx + t)
            self('s_waitcnt lgkmcnt(%d)' % (issued - t - 1))
            s = xb + 4 * (t % nx)
            self('v_mfma_f32_16x16x32_bf16 v[%d:%d], v[%d:%d], v[%d:%d], %s' % (acc, acc + 3, wa + 4 * t, wa + 4 * t + 3, s, s + 3, '0' if t == 0 else 'v[%d:%d]' % (acc, acc + 3)))
            if t + nx < 16:
                self('ds_read_b128 v[%d:%d], v%d offset:%d' % (s, s + 3, xaddr, xoff + 64 * (t + nx)))

    def trload(self, wa, addr, tstride, estride, nt=16, base=0):
        for t in range(nt):
            for e in range(2):
                r = wa + 4 * t + 2 * e
                self('ds_read_b64_tr_b16 v[%d:%d], v%d offset:%d' % (r, r + 1, addr, base + tstride * t + estride * e))


def gen(debug=False, opts=None):
    o = Gen(debug, opts)
    opts = o.opts
    hdr = open('cdna_kernels/%s.s.ref' % KNAME).read().split('\n')
    head = [l for l in hdr if l.startswith(';') and '@launch' not in l and 'Override launch' not in l and 'grid=ceil' not in l]
    out = head + ['; @launch grid=(256,1,1) block=(512,1,1) lds=%d' % LDS_TOTAL,
                  '.amdgcn_target "amdgcn-amd-amdhsa--gfx950"', '.text', '.globl %s' % KN, '.p2align 8',
                  '.type %s,@function' % KN, '%s:' % KN]

    if debug:
        o('s_memrealtime s[70:71]')
    o('''
    s_cmp_ge_u32 s2, 256
    s_cbranch_scc1 L_exit
    s_load_dwordx16 s[16:31], s[0:1], 0
    s_load_dwordx8 s[32:39], s[0:1], 64
    s_load_dwordx2 s[40:41], s[0:1], 104
    v_lshrrev_b32 v1, 6, v0
    s_and_b32 s4, s2, 7
    v_readfirstlane_b32 s6, v1
    s_lshr_b32 s5, s2, 3
    v_and_b32 v1, 63, v0
    v_lshrrev_b32 v4, 4, v1
    v_and_b32 v5, 15, v1
    s_cmp_ge_u32 s5, 24
    s_cbranch_scc1 L_AM
    s_cmp_ge_u32 s5, 16
    s_cbranch_scc1 L_BD
    ''')

    o('L_ATT:')
    o('''
    s_cmp_ge_u32 s6, 6
    s_cbranch_scc1 L_exit
    s_cmp_ge_u32 s6, 4
    s_cbranch_scc1 L_ATT_POLL
    ''')
    o('''
    v_xor_b32 v6, v5, v4
    v_lshlrev_b32 v6, 4, v6
    v_lshl_add_u32 v6, v4, 8, v6
    v_xor_b32 v7, 64, v6
    v_xor_b32 v8, 0x80, v6
    v_xor_b32 v9, 0xc0, v6
    v_lshlrev_b32 v10, 1, v4
    v_xor_b32 v10, v5, v10
    v_lshlrev_b32 v10, 4, v10
    v_lshl_add_u32 v10, v4, 8, v10
    v_xor_b32 v11, 0x80, v10
    s_lshl_b32 s7, s4, 24
    s_add_u32 s7, s7, 0xf00000
    s_lshl_b32 s8, s5, 2
    s_add_u32 s8, s8, s6
    s_lshl_b32 s8, s8, 10
    s_lshl_b32 s9, s6, 14
    s_waitcnt lgkmcnt(0)
    ''')
    o.ts(1)
    o.srd(44, 18, 19, 's7', 0x100000)
    o.srd(48, 20, 21, 's7', 0x100000)
    o('s_load_dword s42, s[40:41], 0')
    o('s_mov_b32 m0, s9\ns_mov_b32 s10, s8\ns_mov_b32 s11, 0')
    o('L_ATT_K:')
    for a in range(4):
        o('buffer_load_dwordx4 v%d, s[44:47], s10 offen nt lds' % (6 + a))
        o('s_add_u32 m0, m0, 1024\ns_add_u32 s10, s10, 0x10000')
    o('s_add_u32 s11, s11, 1\ns_cmp_lt_u32 s11, 4\ns_cbranch_scc1 L_ATT_K')
    o('s_add_u32 m0, s9, %d\ns_mov_b32 s10, s8\ns_mov_b32 s11, 0' % A_V)
    o('L_ATT_V:')
    for b in range(2):
        o('buffer_load_dwordx4 v%d, s[48:51], s10 offen nt lds' % (10 + b))
        o('s_add_u32 m0, m0, 1024\ns_add_u32 s10, s10, 0x10000')
    o('s_add_u32 s11, s11, 1\ns_cmp_lt_u32 s11, 8\ns_cbranch_scc1 L_ATT_V')
    o.ts(2)
    KA, QB, VA, PB = 64, 128, 192, 128
    o('''
    v_xor_b32 v12, v4, v5
    v_lshlrev_b32 v12, 4, v12
    v_lshl_add_u32 v12, v5, 8, v12
    v_add_u32 v12, s9, v12
    v_xor_b32 v13, 64, v12
    v_xor_b32 v14, 0x80, v12
    v_xor_b32 v15, 0xc0, v12
    ''')
    o('''
    v_and_b32 v16, 3, v5
    v_mul_u32_u24 v17, 320, v16
    v_lshl_add_u32 v17, v4, 4, v17
    v_add_u32 v17, %d, v17
    s_mov_b32 s52, 0x000f000f
    s_mov_b32 s53, s52
    s_lshl_b64 s[54:55], s[52:53], 4
    s_lshl_b64 s[56:57], s[52:53], 8
    s_lshl_b64 s[58:59], s[52:53], 12
    ''' % A_Q)
    for r in range(64):
        o('v_mov_b32 v%d, 0' % (QB + r))
    o('''
    v_lshrrev_b32 v18, 2, v5
    v_lshl_add_u32 v18, v4, 2, v18
    v_and_b32 v19, 7, v18
    v_lshlrev_b32 v19, 1, v19
    v_bfe_u32 v20, v5, 1, 1
    s_lshl_b32 s12, s6, 2
    v_add_u32 v20, s12, v20
    v_xor_b32 v19, v19, v20
    v_lshlrev_b32 v19, 4, v19
    v_lshl_add_u32 v18, v18, 8, v19
    v_and_b32 v19, 1, v5
    v_lshl_add_u32 v18, v19, 3, v18
    v_add_u32 v18, %d, v18
    v_xor_b32 v19, 32, v18
    ''' % A_V)
    o('''
    v_lshlrev_b32 v21, 6, v4
    v_lshl_add_u32 v21, v16, 4, v21
    v_add_u32 v21, %d, v21
    v_lshrrev_b32 v20, 3, v5
    s_lshl_b32 s12, s6, 1
    v_add_u32 v20, s12, v20
    v_lshl_add_u32 v20, v20, 8, v21
    v_bfe_u32 v22, v5, 2, 1
    v_lshl_add_u32 v20, v22, 3, v20
    v_lshlrev_b32 v23, 4, v16
    v_add_u32 v23, %d, v23
    s_lshl_b32 s12, s6, 2
    v_add_u32 v22, s12, v23
    ''' % (A_P, A_M))
    o('''
    v_bfe_u32 v24, v5, 2, 1
    s_lshl_b32 s12, s6, 1
    v_add_u32 v24, s12, v24
    v_lshl_add_u32 v24, v24, 2, v4
    v_lshlrev_b32 v24, 4, v24
    v_lshl_add_u32 v24, v16, 9, v24
    s_lshl_b32 s12, s5, 11
    v_add_u32 v24, s12, v24
    s_lshl_b32 s12, s4, 15
    ''')
    o.wsbase(64, WS_H3F, 's12')
    o.wsbase(66, WS_H3S, 's12')
    o.get_tag()
    o('v_mov_b32 v25, s42\ns_mov_b32 s13, 0xff')
    o('s_waitcnt vmcnt(16)')
    o.ts(3)
    for u in range(4):
        for t in range(4):
            r = KA + 16 * u + 4 * t
            o('ds_read_b128 v[%d:%d], v%d offset:%d' % (r, r + 3, 12 + t, 4096 * u))
    o('s_waitcnt vmcnt(0) lgkmcnt(0)')
    o.ts(4)
    o('s_barrier')
    o.ts(5)
    for u in range(4):
        o('s_mov_b64 exec, s[%d:%d]' % (52 + 2 * u, 53 + 2 * u))
        for t in range(4):
            r = QB + 16 * u + 4 * t
            o('ds_read_b128 v[%d:%d], v17 offset:%d' % (r, r + 3, 64 * t))
    o('s_mov_b64 exec, -1')
    S = 28
    vreads = []
    for G in range(8):
        for t2 in range(2):
            for e in range(2):
                r = VA + 32 * t2 + 4 * G + 2 * e
                vreads.append('ds_read_b64_tr_b16 v[%d:%d], v%d offset:%d' % (r, r + 1, 18 + t2, 8192 * G + 4096 * e))
    o('s_waitcnt lgkmcnt(8)')
    k = 0
    for i in range(16):
        if i == 8:
            o('s_waitcnt lgkmcnt(15)')
        r = 4 * i
        o('v_mfma_f32_16x16x32_bf16 v[%d:%d], v[%d:%d], v[%d:%d], %s' % (S, S + 3, KA + r, KA + r + 3, QB + r, QB + r + 3, '0' if i == 0 else 'v[%d:%d]' % (S, S + 3)))
        o(vreads[k]); o(vreads[k + 1]); k += 2
    o('s_mov_b32 s14, 0x%x\ns_mov_b32 s15, 0x%x\ns_nop 5' % (SCALE, LOG2E))
    for r in range(4):
        o('v_cvt_pk_bf16_f32 v%d, 0, v%d' % (S + r, S + r))
    for r in range(4):
        o('v_mul_f32 v%d, s14, v%d' % (S + r, S + r))
    for r in range(4):
        o('v_cvt_pk_bf16_f32 v%d, 0, v%d' % (S + r, S + r))
    o('v_max3_f32 v32, v%d, v%d, v%d\nv_max_f32 v32, v32, v%d' % (S, S + 1, S + 2, S + 3))
    o.dpp('v_max_f32', 32, 'row_ror:4')
    o.dpp('v_max_f32', 32, 'row_ror:8')
    o.xrows('v_max_f32', 32, 33)
    o('s_mov_b64 exec, 15\nds_write_b32 v22, v32\ns_mov_b64 exec, -1\ns_waitcnt lgkmcnt(0)\ns_barrier')
    o('ds_read_b128 v[32:35], v23\ns_waitcnt lgkmcnt(0)')
    o('v_max3_f32 v32, v32, v33, v34\nv_max_f32 v32, v32, v35')
    o('v_mul_f32 v33, 0x%x, v32' % NLOG2E)
    for r in range(4):
        o('v_fma_f32 v%d, v%d, s15, v33' % (S + r, S + r))
    for r in range(4):
        o('v_exp_f32 v%d, v%d' % (S + r, S + r))
    o('s_nop 0')
    o('v_cvt_pk_bf16_f32 v34, v%d, v%d\nv_cvt_pk_bf16_f32 v35, v%d, v%d' % (S, S + 1, S + 2, S + 3))
    o('ds_write_b64 v20, v[34:35]')
    o('v_add_f32 v36, v%d, v%d\nv_add_f32 v37, v%d, v%d\nv_add_f32 v36, v36, v37' % (S, S + 1, S + 2, S + 3))
    o.dpp('v_add_f32', 36, 'row_ror:4')
    o.dpp('v_add_f32', 36, 'row_ror:8')
    o.xrows('v_add_f32', 36, 37)
    o('s_mov_b64 exec, 15\nds_write_b32 v22, v36 offset:64\ns_mov_b64 exec, -1\ns_waitcnt lgkmcnt(0)\ns_barrier')
    o.ts(6)
    for G in range(8):
        o('ds_read_b128 v[%d:%d], v21 offset:%d' % (PB + 4 * G, PB + 4 * G + 3, 256 * G))
    o('ds_read_b128 v[36:39], v23 offset:64')
    O0, O1 = 40, 44
    for G in range(8):
        o('s_waitcnt lgkmcnt(%d)' % (8 - G))
        for t2 in range(2):
            acc = (O0, O1)[t2]
            a = VA + 32 * t2 + 4 * G
            o('v_mfma_f32_16x16x32_bf16 v[%d:%d], v[%d:%d], v[%d:%d], %s' % (acc, acc + 3, a, a + 3, PB + 4 * G, PB + 4 * G + 3, '0' if G == 0 else 'v[%d:%d]' % (acc, acc + 3)))
    o('s_waitcnt lgkmcnt(0)')
    o('v_add_f32 v36, v36, v37\nv_add_f32 v38, v38, v39\nv_add_f32 v37, v36, v38')
    o('v_bfi_b32 v36, s13, v25, v32\nv_bfi_b32 v37, s13, v25, v37\nv_mov_b32 v38, v36\nv_mov_b32 v39, v37')
    o('s_nop 1')
    for r in range(4):
        o('v_cndmask_b32 v%d, v%d, v%d, s[54:55]' % (O0 + r, O0 + r, O1 + r))
    for r in range(4):
        o('v_bfi_b32 v%d, s13, v25, v%d' % (O0 + r, O0 + r))
    o('s_or_b64 exec, s[52:53], s[54:55]')
    o('global_store_dwordx4 v24, v[%d:%d], s[64:65]' % (O0, O0 + 3))
    o('s_cmp_lg_u32 s6, 0\ns_cbranch_scc1 L_ATT_noml')
    o('s_lshl_b32 s12, s4, 10\ns_lshl_b32 s10, s5, 4\ns_add_u32 s12, s12, s10')
    o.wsbase(60, WS_MLF, 's12')
    o('s_mov_b64 exec, 15\nv_lshlrev_b32 v26, 8, v1')
    o('global_store_dwordx4 v26, v[36:39], s[60:61]')
    o('s_add_u32 s60, s60, %d\ns_addc_u32 s61, s61, 0' % (WS_MLS - WS_MLF))
    o('global_store_dwordx4 v26, v[36:39], s[60:61] sc1')
    o('s_or_b64 exec, s[52:53], s[54:55]')
    o('L_ATT_noml:')
    o('global_store_dwordx4 v24, v[%d:%d], s[66:67] sc1' % (O0, O0 + 3))
    o('s_mov_b64 exec, -1')
    o.ts(7)
    o('s_cmp_lg_u32 s6, 0\ns_cbranch_scc1 L_ATT_end\ns_cmp_ge_u32 s5, 2\ns_cbranch_scc1 L_ATT_end')

    o('s_lshl_b32 s7, s4, 1\ns_add_u32 s7, s7, s5')
    o.rowmasks(52, 54, 56)
    o('''
    v_and_b32 v6, 7, v1
    v_lshrrev_b32 v7, 3, v1
    s_lshl_b32 s8, s7, 3
    v_add_u32 v8, s8, v6
    v_lshlrev_b32 v8, 4, v8
    v_lshl_add_u32 v9, v7, 11, v8
    v_lshrrev_b32 v10, 2, v8
    v_add_u32 v10, v10, v4
    v_lshlrev_b32 v10, 1, v10
    global_load_ushort v11, v10, s[16:17]
    ''')
    o.wsbase(60, WS_MOD)
    o.wsbase(62, WS_MOD + 6144)
    o.wsbase(64, WS_H4)
    o.poll(['global_load_dwordx4 v[12:15], v8, s[60:61] sc1', 'global_load_dwordx4 v[16:19], v8, s[62:63] sc1',
            'global_load_dwordx4 v[20:23], v9, s[64:65] sc1'], [12, 16, 20], (26, 27, 28))
    o.ts(8)
    o.rowsel(12, 12, 52, 54, 56)
    o.rowsel(16, 16, 52, 54, 56)
    o.rs4(20)
    o.dpp('v_add_f32', 20, 'row_ror:8')
    o('''
    v_and_b32 v12, 0xffff0000, v12
    v_and_b32 v16, 0xffff0000, v16
    v_lshlrev_b32 v11, 16, v11
    v_cvt_pk_bf16_f32 v20, 0, v20
    v_mul_f32 v20, v12, v20
    v_cvt_pk_bf16_f32 v20, 0, v20
    v_add_f32 v20, v11, v20
    v_cvt_pk_bf16_f32 v11, 0, v20
    s_mul_i32 s8, s7, 7168
    v_lshlrev_b32 v8, 4, v6
    v_lshl_add_u32 v8, v7, 7, v8
    v_add_u32 v9, 0x1000, v8
    ''')
    o.wsbase(60, WS_H5, 's8')
    lds = []
    for i in range(7):
        lds.append('global_load_dwordx4 v[%d:%d], v%d, s[60:61] offset:%d sc1' % (32 + 4 * i, 35 + 4 * i, 8 if i < 4 else 9, 1024 * (i % 4)))
    o.poll(lds, [32 + 4 * i for i in range(7)], (26, 27, 28))
    o.ts(9)
    for r in range(4):
        o('v_add_f32 v%d, v%d, v%d' % (32 + r, 32 + r, 36 + r))
        o('v_add_f32 v%d, v%d, v%d' % (40 + r, 40 + r, 44 + r))
        o('v_add_f32 v%d, v%d, v%d' % (48 + r, 48 + r, 52 + r))
    for r in range(4):
        o('v_add_f32 v%d, v%d, v%d' % (32 + r, 32 + r, 40 + r))
        o('v_add_f32 v%d, v%d, v%d' % (48 + r, 48 + r, 56 + r))
    for r in range(4):
        o('v_add_f32 v%d, v%d, v%d' % (32 + r, 32 + r, 48 + r))
    o.rs4(32)
    o.dpp('v_add_f32', 32, 'row_ror:8')
    o('''
    v_cvt_pk_bf16_f32 v32, 0, v32
    v_mul_f32 v32, v16, v32
    v_cvt_pk_bf16_f32 v32, 0, v32
    v_add_f32 v32, v11, v32
    v_cvt_pk_bf16_f32 v32, 0, v32
    s_mov_b32 s52, 0x00ff00ff
    s_mov_b32 s53, s52
    s_mov_b64 exec, s[52:53]
    global_store_short_d16_hi v10, v32, s[38:39]
    s_cmp_lg_u32 s7, 0
    s_cbranch_scc1 L_ATT_end
    s_mov_b64 exec, 1
    v_mov_b32 v2, 0
    global_store_dword v2, v25, s[40:41]
    ''')
    o('L_ATT_end:')
    o.ts(10)
    o.end()

    o('L_ATT_POLL:')
    o('''
    s_sub_u32 s7, s6, 4
    s_lshl_b32 s7, s7, 6
    v_add_u32 v6, s7, v1
    v_lshlrev_b32 v7, 4, v6
    v_lshrrev_b32 v8, 5, v6
    v_mul_u32_u24 v8, 320, v8
    v_and_b32 v9, 31, v6
    v_lshl_add_u32 v8, v9, 3, v8
    v_add_u32 v8, %d, v8
    s_lshl_b32 s12, s4, 11
    s_mov_b32 s14, 0x07060302
    s_waitcnt lgkmcnt(0)
    s_load_dword s42, s[40:41], 0
    ''' % A_Q)
    o.wsbase(60, WS_H2F, 's12')
    o.wsbase(62, WS_H2S, 's12')
    o.get_tag()
    o.poll(['global_load_dwordx4 v[12:15], v7, s[60:61] sc1'], [12], (16, 17, 18), fallback=[(60, 62)])
    o.ts(4)
    o('v_perm_b32 v12, v13, v12, s14\nv_perm_b32 v13, v15, v14, s14\nds_write_b64 v8, v[12:13]\ns_waitcnt lgkmcnt(0)\ns_barrier')
    o.end()

    o('L_BD:')
    o('s_sub_u32 s7, s5, 16')
    o('''
    s_lshl_b32 s8, s6, 8
    v_lshlrev_b32 v6, 4, v5
    v_lshl_add_u32 v6, v4, 13, v6
    v_add_u32 v6, s8, v6
    v_add_u32 v7, 0x1000, v6
    s_lshr_b32 s8, s6, 1
    s_lshl_b32 s8, s8, 8
    v_lshlrev_b32 v8, 6, v4
    v_add_u32 v8, s8, v8
    s_lshl_b32 s8, s6, 7
    s_add_u32 s8, s8, %d
    v_lshlrev_b32 v9, 1, v4
    v_lshl_add_u32 v9, v5, 3, v9
    v_add_u32 v9, s8, v9
    s_cmp_ge_u32 s6, 4
    s_cbranch_scc1 L_BD_HELP
    ''' % B_O)
    o('''
    v_lshrrev_b32 v10, 3, v1
    v_and_b32 v11, 7, v1
    v_and_b32 v12, 2, v10
    v_xor_b32 v11, v11, v12
    v_lshlrev_b32 v11, 4, v11
    v_lshl_add_u32 v12, v10, 13, v11
    v_xor_b32 v13, 64, v12
    v_lshl_add_u32 v14, v10, 10, v11
    v_xor_b32 v15, 64, v14
    s_lshl_b32 s8, s4, 10
    s_lshl_b32 s9, s7, 7
    s_add_u32 s8, s8, s9
    s_sub_u32 s10, 0x400000, s8
    s_lshl_b32 s11, s4, 19
    s_add_u32 s11, s11, s9
    s_sub_u32 s12, 0x400000, s11
    s_lshl_b32 s9, s6, 14
    s_waitcnt lgkmcnt(0)
    ''')
    o.ts(1)
    o.srd(44, 22, 23, 's8', 's10')
    o.srd(48, 24, 25, 's11', 's12')
    o('s_load_dword s42, s[40:41], 0')
    o('s_mov_b32 m0, s9\ns_lshl_b32 s10, s6, 20\ns_mov_b32 s11, 0')
    o('L_BD_WQ:')
    for b in range(2):
        o('buffer_load_dwordx4 v%d, s[44:47], s10 offen nt lds' % (12 + b))
        o('s_add_u32 m0, m0, 1024\ns_add_u32 s10, s10, 0x10000')
    o('s_add_u32 s11, s11, 1\ns_cmp_lt_u32 s11, 8\ns_cbranch_scc1 L_BD_WQ')
    o('''
    v_lshrrev_b32 v16, 2, v5
    v_and_b32 v17, 2, v16
    v_and_b32 v18, 1, v4
    v_lshl_or_b32 v17, v18, 2, v17
    v_bfe_u32 v18, v5, 1, 1
    s_lshl_b32 s8, s6, 1
    v_add_u32 v18, s8, v18
    v_xor_b32 v17, v17, v18
    v_lshl_add_u32 v16, v4, 3, v16
    v_lshlrev_b32 v16, 7, v16
    v_lshl_add_u32 v16, v17, 4, v16
    v_and_b32 v17, 1, v5
    v_lshl_add_u32 v16, v17, 3, v16
    v_add_u32 v17, %d, v16
    v_lshlrev_b32 v18, 4, v4
    v_add_u32 v18, %d, v18
    s_lshl_b32 s8, s7, 8
    s_lshl_b32 s10, s6, 6
    s_add_u32 s8, s8, s10
    v_lshlrev_b32 v19, 4, v4
    v_add_u32 v19, s8, v19
    s_lshl_b32 s12, s4, 11
    s_mov_b32 s52, 0x00010001
    s_mov_b32 s53, s52
    s_mov_b32 s13, 0xff
    ''' % (B_WO, B_X))
    o.wsbase(64, WS_H2F, 's12')
    o.wsbase(66, WS_H2S, 's12')
    o.wsbase(68, WS_H4, 's12')
    o.get_tag()
    o('v_mov_b32 v25, s42')
    o('s_waitcnt vmcnt(0)')
    o.ts(2)
    o('s_barrier')
    WA, XB, ACC = 64, 128, 28
    o.trload(WA, 16, 4096, 512)
    o('s_waitcnt lgkmcnt(0)')
    o.ts(3)
    o('s_barrier')
    o.ts(4)
    o.gemv16(ACC, WA, XB, 18, 0)
    o('s_add_u32 m0, s9, %d\ns_lshl_b32 s10, s6, 17\ns_mov_b32 s11, 0\ns_nop 4' % B_WO)
    for r in range(4):
        o('v_cvt_pk_bf16_f32 v%d, 0, v%d' % (ACC + r, ACC + r))
    for r in range(4):
        o('v_or_b32 v%d, s42, v%d' % (ACC + r, ACC + r))
    o('s_mov_b64 exec, s[52:53]')
    o('global_store_dwordx4 v19, v[%d:%d], s[64:65]' % (ACC, ACC + 3))
    o('global_store_dwordx4 v19, v[%d:%d], s[66:67] sc1' % (ACC, ACC + 3))
    o('s_mov_b64 exec, -1')
    o.ts(5)
    o('L_BD_WO:')
    for b in range(2):
        o('buffer_load_dwordx4 v%d, s[48:51], s10 offen nt lds' % (14 + b))
        o('s_add_u32 m0, m0, 1024\ns_add_u32 s10, s10, 0x2000')
    o('s_add_u32 s11, s11, 1\ns_cmp_lt_u32 s11, 8\ns_cbranch_scc1 L_BD_WO')
    o('s_waitcnt vmcnt(0)')
    o.ts(6)
    o('s_barrier')
    o.trload(WA, 17, 4096, 512)
    o('s_branch L_BD_COMB')

    o('L_BD_HELP:')
    o('''
    s_mov_b32 s14, 0x07060302
    s_waitcnt lgkmcnt(0)
    s_load_dword s42, s[40:41], 0
    ''')
    o.wsbase(60, WS_H1)
    o.get_tag()
    o('s_barrier')
    o('s_cmp_ge_u32 s6, 6\ns_cbranch_scc1 L_BD_NOPOLL')
    o('''
    s_sub_u32 s8, s6, 4
    s_lshl_b32 s8, s8, 6
    v_add_u32 v10, s8, v1
    v_lshrrev_b32 v11, 1, v10
    v_lshlrev_b32 v11, 7, v11
    v_and_b32 v12, 1, v10
    v_lshl_add_u32 v11, v12, 4, v11
    v_lshlrev_b32 v10, 3, v10
    v_add_u32 v10, %d, v10
    ''' % B_X)
    o.poll(['global_load_dwordx4 v[12:15], v11, s[60:61] sc1'], [12], (16, 17, 18))
    o.ts(3)
    o('v_perm_b32 v12, v13, v12, s14\nv_perm_b32 v13, v15, v14, s14\nds_write_b64 v10, v[12:13]\ns_waitcnt lgkmcnt(0)')
    o('L_BD_NOPOLL:')
    o('s_barrier')
    o('s_barrier')

    o('L_BD_COMB:')
    o('s_lshl_b32 s12, s4, 15')
    o.wsbase(54, WS_H3F, 's12')
    o.wsbase(56, WS_H3S, 's12')
    o('s_lshl_b32 s12, s4, 10')
    o.wsbase(58, WS_MLF, 's12')
    o.wsbase(60, WS_MLS, 's12')
    OG, MG = 32, 48
    lds = []
    for i in range(4):
        lds.append('global_load_dwordx4 v[%d:%d], v8, s[58:59] offset:%d sc1' % (MG + 4 * i, MG + 4 * i + 3, 16 * i))
    for i in range(4):
        lds.append('global_load_dwordx4 v[%d:%d], v%d, s[54:55] offset:%d sc1' % (OG + 4 * i, OG + 4 * i + 3, 6 + i // 2, 2048 * (i % 2)))
    o.poll(lds, [MG + 4 * i for i in range(4)] + [OG + 4 * i for i in range(4)], (20, 21, 22), fallback=[(54, 56), (58, 60)])
    o.ts(7)
    o('s_mov_b32 s15, 0x%x' % LOG2E)
    for i in range(4):
        o('v_and_b32 v%d, 0xffffff00, v%d' % (MG + 4 * i, MG + 4 * i))
    o('v_max3_f32 v20, v%d, v%d, v%d\nv_max_f32 v20, v20, v%d' % (MG, MG + 4, MG + 8, MG + 12))
    o.xrows('v_max_f32', 20, 21)
    o('v_mul_f32 v20, 0x%x, v20' % NLOG2E)
    for i in range(4):
        o('v_fma_f32 v%d, v%d, s15, v20' % (MG + 4 * i, MG + 4 * i))
    for i in range(4):
        o('v_exp_f32 v%d, v%d' % (MG + 4 * i, MG + 4 * i))
    o('s_nop 0')
    o('v_mul_f32 v20, v%d, v%d' % (MG, MG + 1))
    for r in range(4):
        o('v_mul_f32 v%d, v%d, v%d' % (OG + r, MG, OG + r))
    for i in range(1, 4):
        o('v_fmac_f32 v20, v%d, v%d' % (MG + 4 * i, MG + 4 * i + 1))
        for r in range(4):
            o('v_fmac_f32 v%d, v%d, v%d' % (OG + r, MG + 4 * i, OG + 4 * i + r))
    o.xrows('v_add_f32', 20, 21)
    o('v_rcp_f32 v20, v20')
    o.rs4(OG)
    o('v_mul_f32 v%d, v%d, v20\nv_cvt_pk_bf16_f32 v%d, 0, v%d' % (OG, OG, OG, OG))
    o('ds_write_b16_d16_hi v9, v%d\ns_waitcnt lgkmcnt(0)\ns_barrier' % OG)
    o.ts(8)
    o('s_cmp_ge_u32 s6, 4\ns_cbranch_scc1 L_BD_end')
    o.gemv16(ACC, WA, XB, 18, B_O - B_X)
    o('s_nop 7')
    for r in range(4):
        o('v_bfi_b32 v%d, s13, v25, v%d' % (ACC + r, ACC + r))
    o('s_mov_b64 exec, s[52:53]')
    o('global_store_dwordx4 v19, v[%d:%d], s[68:69] sc1' % (ACC, ACC + 3))
    o('L_BD_end:')
    o.ts(9)
    o.end()

    o('L_AM:')
    o('''
    s_sub_u32 s7, s5, 24
    s_lshl_b32 s8, s4, 3
    s_add_u32 s8, s8, s7
    s_mul_i32 s9, s4, 7
    s_add_u32 s9, s9, s7
    s_cmp_ge_u32 s6, 4
    s_cbranch_scc1 L_AM_HELP
    ''')
    o('''
    v_lshrrev_b32 v6, 1, v1
    v_mul_u32_u24 v6, 6144, v6
    v_and_b32 v7, 1, v1
    v_lshl_add_u32 v6, v7, 10, v6
    s_lshl_b32 s10, s8, 4
    s_sub_u32 s11, 0x300000, s10
    s_mul_i32 s12, s6, %d
    s_lshl_b32 s13, s6, 12
    s_waitcnt lgkmcnt(0)
    ''' % (128 * 6144))
    o.ts(1)
    o.srd(44, 36, 37, 's10', 's11')
    o('s_load_dword s42, s[40:41], 0')
    o('s_mov_b32 m0, s13\ns_mov_b32 s10, s12')
    pol = opts.get('acpol', 'nt')
    for ii in range(4):
        o('buffer_load_dwordx4 v6, s[44:47], s10 offen %s lds' % pol)
        if ii < 3:
            o('s_add_u32 m0, m0, 1024\ns_add_u32 s10, s10, %d' % (32 * 6144))
    o('''
    v_lshrrev_b32 v14, 2, v1
    v_and_b32 v15, 3, v1
    v_lshrrev_b32 v16, 5, v1
    v_lshlrev_b32 v17, 1, v16
    v_xor_b32 v17, v15, v17
    v_mul_u32_u24 v7, 6144, v14
    v_lshl_add_u32 v7, v17, 4, v7
    v_xor_b32 v17, v15, v16
    v_mul_u32_u24 v8, 3584, v14
    v_lshl_add_u32 v8, v17, 4, v8
    v_xor_b32 v9, 32, v8
    v_and_b32 v10, 1, v4
    v_lshlrev_b32 v10, 3, v10
    v_xor_b32 v10, v1, v10
    s_and_b32 s10, s6, 1
    s_lshl_b32 s10, s10, 2
    v_xor_b32 v10, s10, v10
    v_lshlrev_b32 v10, 4, v10
    v_xor_b32 v11, 16, v10
    v_xor_b32 v12, 32, v10
    v_xor_b32 v13, 48, v10
    ''')
    o('''
    v_lshrrev_b32 v14, 2, v5
    v_lshl_add_u32 v14, v4, 3, v14
    v_lshlrev_b32 v14, 5, v14
    v_and_b32 v16, 1, v5
    v_lshl_add_u32 v14, v16, 4, v14
    v_bfe_u32 v16, v5, 1, 1
    v_lshl_add_u32 v14, v16, 3, v14
    v_lshlrev_b32 v15, 4, v4
    v_add_u32 v15, %d, v15
    v_lshrrev_b32 v16, 1, v4
    v_lshlrev_b32 v16, 4, v16
    v_add_u32 v17, %d, v16
    s_lshl_b32 s10, s8, 7
    ''' % (M_S, M_N))
    o.wsbase(60, WS_H1, 's10')
    o.get_tag()
    o('s_waitcnt vmcnt(0)')
    o.ts(2)
    o('s_barrier')
    o('s_cmp_lg_u32 s6, 0\ns_cbranch_scc1 L_AM_STREAM')
    WA, XB, ACC = 64, 128, 28
    o.trload(WA, 14, 1024, 128)
    o('ds_read_b128 v[20:23], v17')
    o('s_waitcnt lgkmcnt(0)')
    o.gemv16(ACC, WA, XB, 15, 0)
    o('s_nop 7')
    for r in range(4):
        o('v_cvt_pk_bf16_f32 v%d, 0, v%d' % (ACC + r, ACC + r))
    for r in range(4):
        o('v_mov_b32 v%d, v%d' % (32 + r, ACC + r))
    o('s_nop 1')
    for r in range(4):
        o('v_permlane16_swap_b32 v%d, v%d' % (ACC + r, 32 + r))
    for r in range(4):
        o('v_add_f32 v%d, 1.0, v%d' % (32 + r, 32 + r))
    for r in range(4):
        o('v_cvt_pk_bf16_f32 v%d, 0, v%d' % (32 + r, 32 + r))
    for r in range(4):
        o('v_mul_f32 v%d, v%d, v%d' % (32 + r, 32 + r, 20 + r))
    for r in range(4):
        o('v_cvt_pk_bf16_f32 v%d, 0, v%d' % (32 + r, 32 + r))
    for r in range(4):
        o('v_add_f32 v%d, v%d, v%d' % (32 + r, 32 + r, ACC + r))
    for r in range(4):
        o('v_cvt_pk_bf16_f32 v%d, 0, v%d' % (32 + r, 32 + r))
    for r in range(4):
        o('v_or_b32 v%d, s42, v%d' % (32 + r, 32 + r))
    o('s_mov_b32 s52, 1\ns_mov_b32 s53, 1\ns_mov_b64 exec, s[52:53]')
    o('global_store_dwordx4 v16, v[32:35], s[60:61] sc1')
    o('s_mov_b64 exec, -1')
    o.ts(3)

    o('L_AM_STREAM:')
    o('s_lshl_b32 s10, s8, 6\ns_add_u32 s10, s10, 2048\ns_sub_u32 s11, 0x300000, s10')
    o.srd(44, 36, 37, 's10', 's11')
    o('s_lshl_b32 s13, s6, 13\ns_add_u32 m0, s13, %d\ns_mov_b32 s10, s12\ns_mov_b32 s11, 0' % M_MR)
    o('L_AM_MR:')
    o('buffer_load_dwordx4 v7, s[44:47], s10 offen nt lds')
    o('s_add_u32 m0, m0, 1024\ns_add_u32 s10, s10, %d' % (16 * 6144))
    o('s_add_u32 s11, s11, 1\ns_cmp_lt_u32 s11, 8\ns_cbranch_scc1 L_AM_MR')
    o('s_cmp_lt_u32 s7, 7\ns_cbranch_scc1 L_AM_MLPLD')
    o('s_waitcnt vmcnt(0)\ns_barrier')
    o.end()
    o('L_AM_MLPLD:')
    o('s_lshl_b32 s10, s9, 6\ns_sub_u32 s11, %d, s10' % (512 * 3584))
    o.srd(44, 28, 29, 's10', 's11')
    o.srd(48, 30, 31, 's10', 's11')
    o('s_mul_i32 s12, s6, %d' % (128 * 3584))
    o('s_add_u32 s14, s13, %d\ns_add_u32 s15, s13, %d\ns_mov_b32 s10, s12\ns_mov_b32 s11, 0' % (M_GATE, M_UP))
    o('L_AM_GU:')
    o('s_mov_b32 m0, s14\ns_add_u32 s14, s14, 1024')
    o('buffer_load_dwordx4 v8, s[44:47], s10 offen nt lds')
    o('s_mov_b32 m0, s15\ns_add_u32 s15, s15, 1024')
    o('buffer_load_dwordx4 v9, s[48:51], s10 offen nt lds')
    o('s_add_u32 s10, s10, %d' % (16 * 3584))
    o('s_add_u32 s11, s11, 1\ns_cmp_lt_u32 s11, 8\ns_cbranch_scc1 L_AM_GU')
    o('s_lshl_b32 s10, s9, 15')
    o.srd(44, 32, 33, 's10', 32768)
    o('s_add_u32 m0, s13, %d\ns_mov_b32 s10, s13' % M_DN)
    for ii in range(8):
        o('buffer_load_dwordx4 v%d, s[44:47], s10 offen nt lds' % (10 + ii % 4))
        if ii < 7:
            o('s_add_u32 m0, m0, 1024\ns_add_u32 s10, s10, 1024')
    o.ts(4)
    o('''
    v_lshrrev_b32 v14, 2, v5
    v_lshl_add_u32 v14, v4, 3, v14
    v_and_b32 v16, 1, v5
    v_and_b32 v17, 1, v4
    v_lshl_or_b32 v17, v16, 1, v17
    v_xor_b32 v17, s6, v17
    v_lshlrev_b32 v6, 6, v14
    v_lshl_add_u32 v6, v17, 4, v6
    v_bfe_u32 v17, v5, 1, 1
    v_lshl_add_u32 v6, v17, 3, v6
    v_lshl_add_u32 v6, v16, 15, v6
    v_add_u32 v6, %d, v6
    ''' % M_GATE)
    o('''
    v_and_b32 v16, 3, v5
    v_lshlrev_b32 v7, 3, v16
    s_lshr_b32 s10, s6, 1
    s_lshl_b32 s10, s10, 5
    s_and_b32 s11, s6, 1
    s_lshl_b32 s11, s11, 2
    s_add_u32 s10, s10, s11
    v_add_u32 v7, s10, v7
    v_lshrrev_b32 v17, 2, v5
    v_and_b32 v18, 1, v4
    v_lshl_or_b32 v17, v18, 2, v17
    v_xor_b32 v7, v7, v17
    v_lshrrev_b32 v17, 1, v16
    v_lshlrev_b32 v17, 3, v17
    v_xor_b32 v7, v7, v17
    v_lshlrev_b32 v7, 4, v7
    v_and_b32 v17, 1, v5
    v_lshl_add_u32 v7, v17, 3, v7
    v_lshl_add_u32 v7, v14, 10, v7
    v_add_u32 v7, %d, v7
    ''' % M_DN)
    DA, XD = 160, 192
    for r in range(32):
        o('v_mov_b32 v%d, 0' % (XD + r))
    o('s_waitcnt vmcnt(24)\ns_barrier')
    o('s_waitcnt vmcnt(0)')
    o.ts(5)
    o('s_barrier')
    o.trload(WA, 6, 2048, 256)
    for up in range(8):
        x = ((up // 2) << 4) ^ ((up % 2) << 3)
        if x:
            o('v_xor_b32 v8, %d, v7' % x)
        for e in range(2):
            r = DA + 4 * up + 2 * e
            o('ds_read_b64_tr_b16 v[%d:%d], v%d offset:%d' % (r, r + 1, 8 if x else 7, 4096 * e))
    o('s_branch L_AM_MLP')

    o('L_AM_HELP:')
    o('v_lshlrev_b32 v6, 4, v1\ns_waitcnt lgkmcnt(0)\ns_load_dword s42, s[40:41], 0')
    o('s_cmp_ge_u32 s6, 6\ns_cbranch_scc1 L_AM_H_B0')
    o('s_cmp_eq_u32 s6, 5\ns_cbranch_scc1 L_AM_H_LN')
    o('global_load_dwordx4 v[8:11], v6, s[34:35]\nv_add_u32 v7, %d, v6\ns_waitcnt vmcnt(0)' % M_S)
    for k in range(4):
        o('v_lshlrev_b32 v%d, 16, v%d\nv_and_b32 v%d, 0xffff0000, v%d' % (12 + 2 * k, 8 + k, 13 + 2 * k, 8 + k))
    for k in range(8):
        o('v_mul_f32 v%d, 0x%x, v%d' % (20 + k, NLOG2E, 12 + k))
    for k in range(8):
        o('v_exp_f32 v%d, v%d' % (20 + k, 20 + k))
    for k in range(8):
        o('v_add_f32 v%d, 1.0, v%d' % (20 + k, 20 + k))
    for k in range(8):
        o('v_rcp_f32 v%d, v%d' % (20 + k, 20 + k))
    for k in range(8):
        o('v_mul_f32 v%d, v%d, v%d' % (12 + k, 12 + k, 20 + k))
    for k in range(4):
        o('v_cvt_pk_bf16_f32 v%d, v%d, v%d' % (8 + k, 12 + 2 * k, 13 + 2 * k))
    o('ds_write_b128 v7, v[8:11]')
    o('s_branch L_AM_H_B0')
    o('L_AM_H_LN:')
    o('global_load_dwordx4 v[8:11], v6, s[16:17]\ns_waitcnt vmcnt(0)')
    for k in range(4):
        o('v_lshlrev_b32 v%d, 16, v%d\nv_and_b32 v%d, 0xffff0000, v%d' % (12 + 2 * k, 8 + k, 13 + 2 * k, 8 + k))
    o('v_add_f32 v20, v12, v13\nv_mul_f32 v21, v12, v12\nv_fmac_f32 v21, v13, v13')
    for k in range(2, 8):
        o('v_add_f32 v20, v20, v%d\nv_fmac_f32 v21, v%d, v%d' % (12 + k, 12 + k, 12 + k))
    for c in ('row_ror:1', 'row_ror:2', 'row_ror:4', 'row_ror:8'):
        o.dpp('v_add_f32', 20, c)
        o('v_add_f32_dpp v21, v21, v21 %s row_mask:0xf bank_mask:0xf' % c)
    o.xrows('v_add_f32', 20, 22)
    o.xrows('v_add_f32', 21, 22)

    def lnstats(s1, s2, t):
        o('v_mul_f32 v%d, 0x%x, v%d\nv_mul_f32 v%d, 0x%x, v%d' % (s1, INV512, s1, s2, INV512, s2))
        o('v_fma_f32 v%d, -v%d, v%d, v%d' % (s2, s1, s1, s2))
        o('v_max_f32 v%d, 0, v%d' % (s2, s2))
        o('v_cvt_pk_bf16_f32 v%d, 0, v%d\nv_cvt_pk_bf16_f32 v%d, 0, v%d' % (s1, s1, s2, s2))
        o('v_add_f32 v%d, 0x%x, v%d\nv_cvt_pk_bf16_f32 v%d, 0, v%d' % (s2, EPS, s2, s2, s2))
        o('v_sqrt_f32 v%d, v%d\ns_nop 0\nv_cvt_pk_bf16_f32 v%d, 0, v%d' % (s2, s2, s2, s2))
        o('v_rcp_f32 v%d, v%d\ns_nop 0' % (s2, s2))
    lnstats(20, 21, 22)
    for k in range(8):
        o('v_sub_f32 v%d, v%d, v20' % (12 + k, 12 + k))
    for k in range(8):
        o('v_cvt_pk_bf16_f32 v%d, 0, v%d' % (12 + k, 12 + k))
    for k in range(8):
        o('v_mul_f32 v%d, v%d, v21' % (12 + k, 12 + k))
    for k in range(8):
        o('v_cvt_pk_bf16_f32 v%d, 0, v%d' % (12 + k, 12 + k))
    o('v_mov_b32 v7, %d\ns_lshl_b64 exec, 1, s8' % M_N)
    o('ds_write_b128 v7, v[12:15]\nds_write_b128 v7, v[16:19] offset:16\ns_mov_b64 exec, -1')
    o('L_AM_H_B0:')
    o.get_tag()
    o('s_barrier')
    o('''
    s_sub_u32 s10, s6, 4
    v_lshrrev_b32 v14, 2, v5
    v_lshl_add_u32 v14, v4, 3, v14
    v_lshlrev_b32 v14, 6, v14
    v_bfe_u32 v16, v5, 1, 1
    s_lshl_b32 s11, s10, 1
    v_add_u32 v16, s11, v16
    v_and_b32 v17, 1, v4
    v_lshlrev_b32 v17, 1, v17
    v_xor_b32 v16, v16, v17
    v_lshl_add_u32 v14, v16, 4, v14
    v_and_b32 v16, 1, v5
    v_lshl_add_u32 v14, v16, 3, v14
    v_add_u32 v14, %d, v14
    v_lshlrev_b32 v16, 4, v4
    v_add_u32 v15, %d, v16
    s_lshl_b32 s11, s8, 7
    s_lshl_b32 s10, s10, 6
    s_add_u32 s11, s11, s10
    s_mov_b32 s52, 0x00010001
    s_mov_b32 s53, s52
    ''' % (M_MR, M_S))
    o.wsbase(60, WS_MOD, 's11')
    o('s_barrier')
    o('s_cmp_ge_u32 s6, 6\ns_cbranch_scc1 L_AM_H_NOMR')
    o.trload(WA, 14, 2048, 256)
    o('s_waitcnt lgkmcnt(0)')
    o.gemv16(ACC, WA, XB, 15, 0)
    o('s_nop 7')
    for r in range(4):
        o('v_cvt_pk_bf16_f32 v%d, 0, v%d' % (ACC + r, ACC + r))
    for r in range(4):
        o('v_or_b32 v%d, s42, v%d' % (ACC + r, ACC + r))
    o('s_mov_b64 exec, s[52:53]')
    o('global_store_dwordx4 v16, v[%d:%d], s[60:61] sc1' % (ACC, ACC + 3))
    o('s_mov_b64 exec, -1')
    o.ts(3)
    o('L_AM_H_NOMR:')
    o('s_cmp_lt_u32 s7, 7\ns_cbranch_scc1 L_AM_H_B2')
    o.end()
    o('L_AM_H_B2:')
    o('s_barrier')

    o('L_AM_MLP:')
    o.rowmasks(52, 54, 56)
    o('''
    s_lshl_b32 s10, s6, 8
    v_lshlrev_b32 v8, 4, v5
    v_add_u32 v8, s10, v8
    v_lshl_add_u32 v9, v4, 12, v8
    v_lshrrev_b32 v10, 2, v8
    v_add_u32 v10, v10, v4
    v_lshlrev_b32 v10, 1, v10
    v_add_u32 v11, %d, v10
    global_load_ushort v12, v10, s[16:17]
    ''' % M_H2)
    o.wsbase(60, WS_MOD)
    o.wsbase(62, WS_MOD + 4096)
    o.wsbase(64, WS_H4)
    o.poll(['global_load_dwordx4 v[32:35], v8, s[60:61] sc1', 'global_load_dwordx4 v[36:39], v8, s[60:61] offset:2048 sc1',
            'global_load_dwordx4 v[40:43], v8, s[62:63] sc1'], [32, 36, 40], (20, 21, 22))
    o.rowsel(13, 32, 52, 54, 56)
    o.rowsel(14, 36, 52, 54, 56)
    o.rowsel(15, 40, 52, 54, 56)
    o('''
    v_and_b32 v13, 0xffff0000, v13
    v_and_b32 v14, 0xffff0000, v14
    v_and_b32 v15, 0xffff0000, v15
    v_add_f32 v15, 1.0, v15
    v_cvt_pk_bf16_f32 v15, 0, v15
    v_lshlrev_b32 v12, 16, v12
    s_lshl_b32 s10, s6, 3
    s_add_u32 s10, s10, %d
    v_mov_b32 v16, s10
    v_mov_b32 v17, %d
    v_lshlrev_b32 v18, 4, v4
    v_add_u32 v19, %d, v18
    v_add_u32 v18, %d, v18
    s_lshl_b32 s10, s6, 4
    s_add_u32 s10, s10, %d
    v_lshlrev_b32 v23, 2, v4
    v_add_u32 v23, s10, v23
    v_mov_b32 v25, s42
    s_mov_b32 s13, 0xff
    ''' % (M_ST, M_ST, M_HH, M_H2, M_HH))
    o('''
    s_lshr_b32 s10, s6, 1
    s_lshl_b32 s10, s10, 3
    s_and_b32 s11, s6, 1
    s_add_u32 s10, s10, s11
    v_lshlrev_b32 v24, 1, v4
    v_add_u32 v24, s10, v24
    v_mul_u32_u24 v24, 7168, v24
    v_and_b32 v20, 7, v5
    v_and_b32 v21, 1, v4
    v_xor_b32 v20, v20, v21
    v_lshl_add_u32 v24, v20, 4, v24
    s_lshl_b32 s10, s9, 7
    s_lshl_b32 s11, s11, 3
    s_mov_b32 s58, 0x00010001
    s_mov_b32 s59, s58
    s_lshl_b64 s[58:59], s[58:59], s11
    s_mov_b32 s66, 0x00ff00ff
    s_mov_b32 s67, s66
    s_lshl_b64 s[66:67], s[66:67], s11
    ''')
    o.wsbase(60, WS_H5, 's10')
    o('s_waitcnt lgkmcnt(0)')
    o.ts(6)
    o.poll(['global_load_dwordx4 v[32:35], v9, s[64:65] sc1', 'global_load_dwordx4 v[36:39], v9, s[64:65] offset:2048 sc1'], [32, 36], (20, 21, 22))
    o.ts(7)
    for r in range(4):
        o('v_add_f32 v%d, v%d, v%d' % (32 + r, 32 + r, 36 + r))
    o.rs4(32)
    o('''
    v_cvt_pk_bf16_f32 v32, 0, v32
    v_mul_f32 v32, v13, v32
    v_cvt_pk_bf16_f32 v32, 0, v32
    v_add_f32 v32, v12, v32
    v_cvt_pk_bf16_f32 v32, 0, v32
    v_mul_f32 v21, v32, v32
    v_mov_b32 v20, v32
    ''')
    for c in ('row_ror:1', 'row_ror:2', 'row_ror:4', 'row_ror:8'):
        o.dpp('v_add_f32', 20, c)
        o('v_add_f32_dpp v21, v21, v21 %s row_mask:0xf bank_mask:0xf' % c)
    o('s_nop 1\nv_permlane16_swap_b32 v20, v21\nv_add_f32 v20, v20, v21')
    o('v_mov_b32 v21, v20\ns_nop 1\nv_permlane32_swap_b32 v20, v21\nv_add_f32 v20, v20, v21')
    o('v_lshl_add_u32 v21, v4, 2, v16\ns_mov_b64 exec, 0x10001\nds_write_b32 v21, v20\ns_mov_b64 exec, -1\ns_waitcnt lgkmcnt(0)\ns_barrier')
    for k in range(4):
        o('ds_read_b128 v[%d:%d], v17 offset:%d' % (36 + 4 * k, 39 + 4 * k, 16 * k))
    o('s_waitcnt lgkmcnt(0)')
    o('v_pk_add_f32 v[36:37], v[36:37], v[38:39]\nv_pk_add_f32 v[40:41], v[40:41], v[42:43]\nv_pk_add_f32 v[44:45], v[44:45], v[46:47]\nv_pk_add_f32 v[48:49], v[48:49], v[50:51]')
    o('v_pk_add_f32 v[36:37], v[36:37], v[40:41]\nv_pk_add_f32 v[44:45], v[44:45], v[48:49]\nv_pk_add_f32 v[36:37], v[36:37], v[44:45]')
    lnstats(36, 37, 38)
    o('''
    v_sub_f32 v32, v32, v36
    v_cvt_pk_bf16_f32 v32, 0, v32
    v_mul_f32 v32, v32, v37
    v_cvt_pk_bf16_f32 v32, 0, v32
    v_mul_f32 v32, v32, v15
    v_cvt_pk_bf16_f32 v32, 0, v32
    v_add_f32 v32, v32, v14
    v_cvt_pk_bf16_f32 v32, 0, v32
    ds_write_b16_d16_hi v11, v32
    s_waitcnt lgkmcnt(0)
    s_barrier
    ''')
    o.ts(8)
    o('s_cmp_ge_u32 s6, 4\ns_cbranch_scc1 L_AM_end')
    o.gemv16(ACC, WA, XB, 18, 0)
    o('s_nop 7')
    for r in range(4):
        o('v_cvt_pk_bf16_f32 v%d, 0, v%d' % (ACC + r, ACC + r))
    o('s_nop 1')
    o('v_permlane16_swap_b32 v%d, v%d\nv_permlane16_swap_b32 v%d, v%d' % (ACC, ACC + 2, ACC + 1, ACC + 3))
    o('v_mul_f32 v%d, v%d, v%d\nv_mul_f32 v%d, v%d, v%d' % (ACC, ACC, ACC + 2, ACC + 1, ACC + 1, ACC + 3))
    o('v_cvt_pk_bf16_f32 v%d, v%d, v%d' % (ACC, ACC, ACC + 1))
    o('s_mov_b32 s52, 0x00010001\ns_mov_b32 s53, s52\ns_mov_b64 exec, s[52:53]')
    o('ds_write_b32 v23, v%d\ns_waitcnt lgkmcnt(0)\ns_barrier' % ACC)
    for up in range(8):
        o('s_lshl_b64 exec, s[58:59], %d' % up)
        o('ds_read_b128 v[%d:%d], v19' % (XD + 4 * up, XD + 4 * up + 3))
    o('s_mov_b64 exec, -1')
    for up in range(8):
        o('s_waitcnt lgkmcnt(%d)' % (7 - up))
        o('v_mfma_f32_16x16x32_bf16 v[%d:%d], v[%d:%d], v[%d:%d], %s' % (ACC, ACC + 3, DA + 4 * up, DA + 4 * up + 3, XD + 4 * up, XD + 4 * up + 3, '0' if up == 0 else 'v[%d:%d]' % (ACC, ACC + 3)))
    o('s_nop 7')
    for r in range(4):
        o('v_bfi_b32 v%d, s13, v25, v%d' % (ACC + r, ACC + r))
    o('s_mov_b64 exec, s[66:67]')
    o('global_store_dwordx4 v24, v[%d:%d], s[60:61] sc1' % (ACC, ACC + 3))
    o('L_AM_end:')
    o.ts(9)
    o.end()

    o('L_exit:')
    o('s_endpgm')

    out += o.L
    out += ['.section .rodata,"a"', '.p2align 6', '.amdhsa_kernel %s' % KN,
            '  .amdhsa_next_free_vgpr 256', '  .amdhsa_next_free_sgpr 102', '  .amdhsa_accum_offset 256',
            '  .amdhsa_group_segment_fixed_size 0', '  .amdhsa_kernarg_size 112', '  .amdhsa_user_sgpr_count 2',
            '  .amdhsa_user_sgpr_kernarg_segment_ptr 1', '  .amdhsa_system_sgpr_workgroup_id_x 1', '.end_amdhsa_kernel']
    return '\n'.join(out) + '\n'


if __name__ == '__main__':
    debug = '--debug' in sys.argv
    path = [a for a in sys.argv[1:] if not a.startswith('--')][0]
    open(path, 'w').write(gen(debug))
```
